```python
import torch

def _softmax(x, axis=-1):
    return torch.softmax(x, dim=axis)
def _gelu(x):
    return torch.nn.functional.gelu(x, approximate="tanh")
def _silu(x):
    return torch.nn.functional.silu(x)
def _sigmoid(x):
    return torch.sigmoid(x)
def _layernorm(x, axis=-1, eps=1e-5):
    m = x.mean(dim=axis, keepdim=True)
    v = x.var(dim=axis, keepdim=True, unbiased=False)
    return (x - m) / torch.sqrt(v + eps)
def _scatter_add(tgt, idx, src, axis=0):
    return tgt.clone().index_add_(axis, idx, src)
def _segment_sum(src, seg, n):
    out = torch.zeros((n,) + src.shape[1:], dtype=src.dtype)
    return out.index_add_(0, seg, src)
def _pad(x, pw):
    flat = tuple(v for pair in reversed(pw) for v in pair)
    return torch.nn.functional.pad(x, flat)

kernel_name = 'sequential_preLN__sliding_local_dilated__mixer_s_mlp__prompt'

def setup_inputs():

    _w = (lambda a: (lambda t: t.to(torch.bfloat16) if t.is_floating_point() else t)(torch.as_tensor(a)))
    def _A_setup():
        B, S, D = 1, 2048, 640
        return {
            "x": _w((lambda *s: torch.randn(*s, dtype=torch.bfloat16) * 0.05)(B, S, D)),
            "wqkv": _w((lambda *s: torch.randn(*s, dtype=torch.bfloat16) * 0.05)(D, 3 * D)),
            "wo": _w((lambda *s: torch.randn(*s, dtype=torch.bfloat16) * 0.05)(D, D)),
        }
    _A_in = _A_setup()

    def _B_setup():
        B, S, D, F = 1, 2048, 640, 1536
        return {
            "x":  _w((lambda *s: torch.randn(*s, dtype=torch.bfloat16) * 0.05)(B, S, D)),
            "w1": _w((lambda *s: torch.randn(*s, dtype=torch.bfloat16) * 3.2)(D, D) * (D ** -0.5)),
            "w2": _w((lambda *s: torch.randn(*s, dtype=torch.bfloat16) * 3.2)(D, D) * (D ** -0.5)),
            "w3": _w((lambda *s: torch.randn(*s, dtype=torch.bfloat16) * 3.2)(D, F) * (D ** -0.5)),
            "w4": _w((lambda *s: torch.randn(*s, dtype=torch.bfloat16) * 3.2)(F, D) * (F ** -0.5)),
        }
    _B_in = _B_setup()

    return {
        "A_x": _A_in["x"],
        "A_wqkv": _A_in["wqkv"],
        "A_wo": _A_in["wo"],
        "B_x": _B_in["x"],
        "B_w1": _B_in["w1"],
        "B_w2": _B_in["w2"],
        "B_w3": _B_in["w3"],
        "B_w4": _B_in["w4"],
    }

def reference(A_x, A_wqkv, A_wo, B_x, B_w1, B_w2, B_w3, B_w4):
    def _A_ref(x, wqkv, wo):
        B, S, D = x.shape
        H = 32; Dh = D // H
        W, dil = 8, 2
        qkv = (lambda x, *d: x.permute(*d))((x @ wqkv).reshape(B, S, 3, H, Dh), 2, 0, 3, 1, 4)
        q, k, v = qkv[0], qkv[1], qkv[2]
        scale = Dh ** -0.5
        pos = torch.arange(S)
        off = torch.arange(W) * dil
        idx = pos[:, None] - off[None, :]
        mask = idx >= 0
        idx_c = torch.where(mask, idx, 0).reshape(-1)
        kg = k[:, :, idx_c, :].reshape(B, H, S, W, Dh)
        vg = v[:, :, idx_c, :].reshape(B, H, S, W, Dh)
        logits = torch.einsum("bhsd,bhswd->bhsw", q, kg) * scale
        logits = torch.where(mask[None, None, :, :], logits, -1e9)
        attn = _softmax(logits, axis=-1)
        o = torch.einsum("bhsw,bhswd->bhsd", attn, vg)
        return (lambda x, *d: x.permute(*d))(o, 0, 2, 1, 3).reshape(B, S, D) @ wo

    def _B_ref(x, w1, w2, w3, w4):
        B, S, D = x.shape
        h = _gelu(_layernorm(x, axis=-1) @ w1)
        c = D // 4
        g0 = _pad(h[:, :, 0*c:1*c], ((0, 0), (1, 0), (0, 0)))[:, :S, :]
        g1 = _pad(h[:, :, 1*c:2*c], ((0, 0), (0, 1), (0, 0)))[:, 1:, :]
        g2 = _pad(h[:, :, 2*c:3*c], ((0, 0), (2, 0), (0, 0)))[:, :S, :]
        g3 = _pad(h[:, :, 3*c:   ], ((0, 0), (0, 2), (0, 0)))[:, 2:, :]
        hs = torch.concatenate([g0, g1, g2, g3], axis=-1) @ w2
        x1 = x + hs
        h2 = _gelu(_layernorm(x1, axis=-1) @ w3) @ w4
        return x1 + h2

    x = A_x
    h = x + _A_ref(_layernorm(x, axis=-1), A_wqkv, A_wo)
    h2 = h + _B_ref(_layernorm(h, axis=-1), B_w1, B_w2, B_w3, B_w4)
    return h2
```

```python
import sys, re
NAME = "sequential_preLN__sliding_local_dilated__mixer_s_mlp__prompt"
src = open(f"cdna_kernels/{NAME}.s").read()
mainl = f"; @launch kernel={NAME}_kernel grid=(256,1,1) block=(256,1,1) lds=163840"
def kd(n): return f'''.section .rodata,"a"
.p2align 6
.amdhsa_kernel {n}
  .amdhsa_next_free_vgpr 32
  .amdhsa_next_free_sgpr 64
  .amdhsa_accum_offset 32
  .amdhsa_group_segment_fixed_size 0
  .amdhsa_kernarg_size 88
  .amdhsa_user_sgpr_count 2
  .amdhsa_user_sgpr_kernarg_segment_ptr 1
  .amdhsa_system_sgpr_workgroup_id_x 1
.end_amdhsa_kernel
'''
noop = ".text\n.globl noop_kernel\n.p2align 8\n.type noop_kernel,@function\nnoop_kernel:\n    s_endpgm\n" + kd("noop_kernel")
def touch(shift):
    L = [".text\n.globl tch_kernel\n.p2align 8\n.type tch_kernel,@function\ntch_kernel:", "s_cmp_ge_u32 s2, 256", "s_cbranch_scc1 L_tend",
         "s_load_dwordx16 s[16:31], s[0:1], 0", "s_load_dwordx4 s[32:35], s[0:1], 64", "s_load_dwordx2 s[36:37], s[0:1], 80", f"v_lshlrev_b32 v1, {shift}, v0", "s_waitcnt lgkmcnt(0)"]
    for p, sz in ((16, 2621440), (18, 2457600), (20, 819200), (24, 819200), (26, 819200), (28, 1966080), (30, 1966080), (32, 2621440), (36, 0x1200000)):
        L += [f"s_mov_b32 s4, s{p}", f"s_mov_b32 s5, s{p+1}", f"s_mov_b32 s6, {sz}", "s_mov_b32 s7, 0x20000", "buffer_load_dword v2, v1, s[4:7], 0 offen"]
        if sz > (256 << shift): L += [f"s_mov_b32 s8, {256 << shift}", "buffer_load_dword v2, v1, s[4:7], s8 offen"]
    L += ["s_waitcnt vmcnt(0)", "L_tend:", "s_endpgm"]
    return "\n".join(L) + "\n" + kd("tch_kernel")
old = re.search(r"; @launch grid=.*\n", src).group(0)
def mk(fn, lines, extra): open(f"cdna_kernels/{fn}", "w").write(src.replace(old, "\n".join(lines) + "\n") + extra)
n = "; @launch kernel=noop_kernel grid=(256,1,1) block=(64,1,1) lds=0"
mk("l_main.s", [mainl], "")
mk("l_noop_main.s", [n, mainl], noop)
mk("l_main_noop.s", [mainl, n], noop)
mk("l_tch16.s", ["; @launch kernel=tch_kernel grid=(16,1,1) block=(256,1,1) lds=0", mainl], touch(16))
mk("l_tch21.s", ["; @launch kernel=tch_kernel grid=(256,1,1) block=(64,1,1) lds=0", mainl], touch(21))
mk("l_main2.s", [mainl, mainl], "")
mk("l_main3.s", [mainl, mainl, mainl], "")
mk("l_n4_main.s", [n, n, n, n, mainl], noop)
def warm(ranges, store=False, perxcd=False, code=False):
    L = [".text\n.globl tch_kernel\n.p2align 8\n.type tch_kernel,@function\ntch_kernel:", "s_cmp_ge_u32 s2, 256", "s_cbranch_scc1 L_tend",
         "s_load_dwordx16 s[16:31], s[0:1], 0", "s_load_dwordx4 s[32:35], s[0:1], 64", "s_load_dwordx2 s[36:37], s[0:1], 80"]
    if perxcd: L += ["s_lshr_b32 s3, s2, 3", "s_lshl_b32 s3, s3, 8"]; nthr = 32 * 256
    else: L += ["s_lshl_b32 s3, s2, 8"]; nthr = 65536
    L += ["v_add_u32 v1, s3, v0", "v_lshlrev_b32 v1, 7, v1", "v_mov_b32 v3, 0", "s_waitcnt lgkmcnt(0)"]
    if code:
        L += ["s_getpc_b64 s[40:41]", "L_pc:", f"s_add_u32 s40, s40, {NAME}_kernel-L_pc", "s_addc_u32 s41, s41, -1", "s_mov_b32 s4, s40", "s_mov_b32 s5, s41", "s_mov_b32 s6, 39000", "s_mov_b32 s7, 0x20000",
              "s_lshr_b32 s3, s2, 3", "s_mul_i32 s3, s3, 10", "v_add_u32 v1, s3, v0", "v_lshlrev_b32 v1, 7, v1", "v_cmp_gt_u32 vcc, 10, v0", "s_and_saveexec_b64 s[10:11], vcc", "s_cbranch_execz L_tend", "buffer_load_dword v2, v1, s[4:7], 0 offen"]
    for p, off, sz in ranges:
        L += [f"s_add_u32 s4, s{p}, {off}", f"s_addc_u32 s5, s{p+1}, 0", f"s_mov_b32 s6, {sz}", "s_mov_b32 s7, 0x20000"]
        for o in range(0, sz, nthr * 128):
            L += [f"s_mov_b32 s8, {o}", ("buffer_store_dword v3" if store else "buffer_load_dword v2") + ", v1, s[4:7], s8 offen"]
    L += ["s_waitcnt vmcnt(0)", "L_tend:", "s_endpgm"]
    return "\n".join(L) + "\n" + kd("tch_kernel")
tl = "; @launch kernel=tch_kernel grid=(256,1,1) block=(256,1,1) lds=0"
ins = [(16, 0, 2621440), (18, 0, 2457600), (20, 0, 819200), (24, 0, 819200), (26, 0, 819200), (28, 0, 1966080), (30, 0, 1966080)]
dum = []; o = 128 << 20
for p, _, sz in ins: dum.append((36, o, sz)); o += 4 << 20
mk("w_in.s", [tl, mainl], warm(ins))
mk("w_in_d.s", [tl, mainl], warm(dum))
mk("w_ws.s", [tl, mainl], warm([(36, 0, 0x1200000), (32, 0, 2621440)]))
mk("w_ws_d.s", [tl, mainl], warm([(36, 128 << 20, 0x1200000), (36, 64 << 20, 2621440)]))
mk("w_code.s", [tl, mainl], warm([], code=True))
mk("w_code_d.s", [tl, mainl], warm([(36, 128 << 20, 40960)], perxcd=True))
```
